```python
import torch

def _softmax(x, axis=-1):
    return torch.softmax(x, dim=axis)

def _gelu(x):
    return torch.nn.functional.gelu(x, approximate='tanh')

def _silu(x):
    return torch.nn.functional.silu(x)

def _sigmoid(x):
    return torch.sigmoid(x)

def _layernorm(x, axis=-1, eps=1e-05):
    m = x.mean(dim=axis, keepdim=True)
    v = x.var(dim=axis, keepdim=True, unbiased=False)
    return (x - m) / torch.sqrt(v + eps)

def _scatter_add(tgt, idx, src, axis=0):
    return tgt.clone().index_add_(axis, idx, src)

def _segment_sum(src, seg, n):
    out = torch.zeros((n,) + src.shape[1:], dtype=src.dtype)
    return out.index_add_(0, seg, src)

def _pad(x, pw):
    flat = tuple((v for pair in reversed(pw) for v in pair))
    return torch.nn.functional.pad(x, flat)
kernel_name = 'gated_mix__softmax_full_mha__mixer_gmlp__prompt'

def setup_inputs():

    _w = lambda a: (lambda t: t.to(torch.bfloat16) if t.is_floating_point() else t)(torch.as_tensor(a))

    def _A_setup():
        B, S, D = (1, 2048, 640)
        return {'x': _w((lambda *s: torch.randn(*s, dtype=torch.bfloat16) * 0.05)(B, S, D)), 'wqkv': _w((lambda *s: torch.randn(*s, dtype=torch.bfloat16) * 0.8)(D, 3 * D)), 'wo': _w((lambda *s: torch.randn(*s, dtype=torch.bfloat16) * 0.1)(D, D))}
    _A_in = _A_setup()

    def _B_setup():
        B, S, D, F = (1, 2048, 640, 1728)
        Fh = F // 2
        return {'x': _w((lambda *s: torch.randn(*s, dtype=torch.bfloat16) * 0.05)(B, S, D)), 'w_in': _w((lambda *s: torch.randn(*s, dtype=torch.bfloat16) * 0.4)(D, 2 * Fh)), 'w_sp': _w(0.01 * (lambda *s: torch.randn(*s, dtype=torch.bfloat16) * 0.4)(S, S)), 'b_sp': _w(1.0 + 0.01 * (lambda *s: torch.randn(*s, dtype=torch.bfloat16) * 0.05)(S)), 'w_out': _w((lambda *s: torch.randn(*s, dtype=torch.bfloat16) * 0.05)(Fh, D))}
    _B_in = _B_setup()
    return {'A_x': _A_in['x'], 'A_wqkv': _A_in['wqkv'], 'A_wo': _A_in['wo'], 'B_x': _B_in['x'], 'B_w_in': _B_in['w_in'], 'B_w_sp': _B_in['w_sp'], 'B_b_sp': _B_in['b_sp'], 'B_w_out': _B_in['w_out'], 'gate_w': _w((lambda *s: torch.randn(*s, dtype=torch.bfloat16) * 0.05)(640) * 16.0)}

def reference(A_x, A_wqkv, A_wo, B_x, B_w_in, B_w_sp, B_b_sp, B_w_out, gate_w):

    def _A_ref(x, wqkv, wo):
        B, S, D = x.shape
        H = 32
        Dh = D // H
        qkv = (lambda x, *d: x.permute(*d))((x @ wqkv).reshape(B, S, 3, H, Dh), 2, 0, 3, 1, 4)
        q, k, v = (qkv[0], qkv[1], qkv[2])
        scale = Dh ** (-0.5)
        scores = torch.einsum('bhqd,bhkd->bhqk', q, k) * scale
        p = _softmax(scores, axis=-1)
        o = torch.einsum('bhqk,bhkd->bhqd', p, v)
        return (lambda x, *d: x.permute(*d))(o, 0, 2, 1, 3).reshape(B, S, D) @ wo

    def _B_ref(x, w_in, w_sp, b_sp, w_out):
        B, S, D = x.shape
        F = w_in.shape[-1]
        Fh = F // 2
        z = _gelu(torch.einsum('bsd,df->bsf', x, w_in))
        z1 = z[..., :Fh].clone()
        z2 = _layernorm(z[..., Fh:], axis=-1)
        g = torch.einsum('ts,bsf->btf', w_sp, z2) + b_sp[None, :, None]
        return torch.einsum('bsf,fd->bsd', z1 * g, w_out)
    x = A_x
    g = _sigmoid((x * gate_w).sum(-1, keepdims=True))
    a = _A_ref(x, A_wqkv, A_wo)
    b = _B_ref(x, B_w_in, B_w_sp, B_b_sp, B_w_out)
    return g * a + (1 - g) * b
```

```python
import sys
from mblib import *
src = '.amdgcn_target "amdgcn-amd-amdhsa--gfx950"\n.text\n'
names=[]
def mk(k, ninstr, touch):
    span = 8192 if touch else 1024
    body = ""
    for i in range(ninstr):
        if touch: body += f"  buffer_load_dword v{8+i}, v1, s[20:23], s24 offen\n"
        else: body += f"  buffer_load_dwordx4 v[{8+4*(i%14)}:{11+4*(i%14)}], v1, s[20:23], s24 offen\n"
        body += f"  s_add_u32 s24, s24, {span*4}\n"
    return f""".globl {k}
.p2align 8
.type {k},@function
{k}:
  s_memrealtime s[40:41]
  s_load_dwordx4 s[4:7], s[0:1], 0      ; out, src
  s_load_dwordx4 s[8:11], s[0:1], 16    ; s8 = per-WG stride bytes, s10 = xcd mode mask
  v_and_b32 v1, 63, v0
  v_lshlrev_b32 v1, {7 if touch else 4}, v1
  v_lshrrev_b32 v2, 6, v0
  s_nop 0
  v_readfirstlane_b32 s25, v2
  s_waitcnt lgkmcnt(0)
  s_mov_b32 s20, s6
  s_mov_b32 s21, s7
  s_mov_b32 s22, 0x10000000
  s_mov_b32 s23, 0x00020000
  ; logical wg index: (wg>>3)*G + ((wg&7) & mask')  : s10 = number of distinct xcd groups (1,2,4,8)
  s_and_b32 s26, s2, 7
  s_sub_u32 s27, s10, 1
  s_and_b32 s26, s26, s27
  s_lshr_b32 s28, s2, 3
  s_mul_i32 s28, s28, s10
  s_add_u32 s28, s28, s26
  s_mul_i32 s24, s28, s8
  s_mul_i32 s29, s25, {span}
  s_add_u32 s24, s24, s29
  s_memtime s[12:13]
{body}
  s_waitcnt vmcnt(0)
  s_memtime s[14:15]
  s_memrealtime s[42:43]
  s_waitcnt lgkmcnt(0)
  s_sub_u32 s14, s14, s12
  v_cmp_eq_u32 vcc, 0, v0
  s_and_saveexec_b64 s[16:17], vcc
  s_cbranch_execz L_end_{k}
  s_lshl_b32 s11, s2, 4
  v_mov_b32 v1, s11
  v_mov_b32 v2, s14
  v_mov_b32 v3, s40
  v_mov_b32 v4, s42
  v_mov_b32 v5, 0
  s_mov_b32 s20, s4
  s_mov_b32 s21, s5
  s_mov_b32 s22, 65536
  buffer_store_dwordx4 v[2:5], v1, s[20:23], 0 offen
  s_waitcnt vmcnt(0)
L_end_{k}:
  s_endpgm
""" + kd(k, 128)
cfgs = [("full20",20,False),("touch3",3,True),("full40",40,False),("touch5",5,True)]
for (k,n,t) in cfgs:
    src += mk(k,n,t); names.append((k,128))
src += ".fill 256, 4, 0xBF800000\n"
co = build(src, names, "mb8")
if len(sys.argv) > 1 and sys.argv[1] == "build": raise SystemExit(0)
m = Mod(co)
out = cl.DeviceBuffer(1<<20)
srcb = cl.DeviceBuffer(0x10000000)
flush = cl.DeviceBuffer(512<<20)
for (k,n,t) in cfgs:
    f = m.fn(k)
    per = n*4*(8192 if t else 1024)
    for groups in (8, 2):
      for cold in (True, False):
        res=[]
        for rep_ in range(3):
            if cold: cl._check(hip.hipMemsetAsync(flush.ptr, rep_, 512<<20, None))
            else: cl._check(hip.hipMemsetAsync(flush.ptr, rep_, 8<<20, None))
            launch(f, (256,1,1), (256,1,1), [out.ptr, srcb.ptr, per, groups])
            sync()
            o = out.to_numpy(np.uint32, (4096,4))[:256].astype(np.int64)
            tot = (o[:,2].max() - o[:,1].min())*10
            res.append((int(np.median(o[:,0])), int(o[:,0].max()), int(tot)))
        byt = per*256
        uniq = per*32*groups
        print(f"{k} groups={groups} cold={cold}: per-WG {per>>10}KB total {byt/1e6:.1f}MB unique {uniq/1e6:.1f}MB: (med cyc, max cyc, wall ns)={res}  -> {byt/res[-1][2]/1e3:.2f} TB/s (L2 fill)", flush=True)
```

```python
import sys
from mblib import *
tests = {}
def phase(reads, nm=4):
    o=[]
    mf = ["v_mfma_f32_32x32x16_bf16 v[80:95], v[2:5], v[8:11], v[80:95]", "v_mfma_f32_32x32x16_bf16 v[64:79], v[2:5], v[6:9], 0",
          "v_mfma_f32_32x32x8_bf16 v[64:79], v[2:3], v[6:7], v[64:79]", "v_mfma_f32_32x32x16_bf16 v[80:95], v[2:5], v[12:15], v[80:95]"][:nm]
    ex=[f"v_exp_f32 v{16+i}, v{32+i}" for i in range(16)]
    pk=[f"v_cvt_pk_bf16_f32 v{16+i%8}, v{32+2*i}, v{33+2*i}" for i in range(8)]
    r = list(reads)
    for m in range(4):
        if m < len(mf): o.append(mf[m])
        if m == 0: o += r
        o += ex[4*m:4*m+4]; o += pk[2*m:2*m+2]
    return o
def body(reads, nm=4):
    return "\n".join(["s_waitcnt lgkmcnt(0)"] + phase(reads, nm) + phase([], nm))
b128 = lambda d, off: f"ds_read_b128 {d}, v1 offset:{off}"
b64 = lambda d, off: f"ds_read_b64 {d}, v1 offset:{off}"
tr = lambda d, off: f"ds_read_b64_tr_b16 {d}, v1 offset:{off}"
tests["none"] = body([])
tests["attn6_v"] = body([b128("v[48:51]",0), b64("v[52:53]",1024), tr("v[54:55]",2048), tr("v[56:57]",2560), tr("v[58:59]", 3072), tr("v[60:61]", 3584)])
tests["attn6_a"] = body([b128("a[0:3]",0), b64("a[4:5]",1024), tr("a[6:7]",2048), tr("a[8:9]",2560), tr("a[10:11]", 3072), tr("a[12:13]", 3584)])
tests["b128x4_v"] = body([b128(f"v[{48+4*i}:{51+4*i}]", 1024*i) for i in range(4)])
tests["b128x4_a"] = body([b128(f"a[{4*i}:{3+4*i}]", 1024*i) for i in range(4)])
tests["b64x8_v"] = body([b64(f"v[{48+2*i}:{49+2*i}]", 512*i) for i in range(8)])
tests["b32x8_v"] = body([f"ds_read_b32 v{48+i}, v1 offset:{256*i}" for i in range(8)])
tests["noM_none"] = body([], 0)
tests["noM_b128x4_v"] = body([b128(f"v[{48+4*i}:{51+4*i}]", 1024*i) for i in range(4)], 0)
src = '.amdgcn_target "amdgcn-amd-amdhsa--gfx950"\n.text\n'
names=[]
NIT=300
for name,bd in tests.items():
    k = f"k_{name}"
    src += f""".globl {k}
.p2align 8
.type {k},@function
{k}:
  s_load_dwordx2 s[4:5], s[0:1], 0
  v_and_b32 v1, 63, v0
  v_lshlrev_b32 v1, 4, v1
""" + "\n".join(f"  v_mov_b32 v{i}, 0" for i in range(2,96)) + f"""
  s_waitcnt lgkmcnt(0)
  s_barrier
  s_mov_b32 s10, {NIT}
  s_memtime s[6:7]
  s_waitcnt lgkmcnt(0)
.p2align 6
L_{k}:
{bd}
  s_sub_u32 s10, s10, 1
  s_cmp_lg_u32 s10, 0
  s_cbranch_scc1 L_{k}
  s_waitcnt lgkmcnt(0)
  s_memtime s[8:9]
  s_waitcnt lgkmcnt(0)
  s_sub_u32 s8, s8, s6
  v_lshrrev_b32 v1, 6, v0
  v_lshlrev_b32 v1, 2, v1
  v_mov_b32 v2, s8
  s_mov_b32 s12, s4
  s_mov_b32 s13, s5
  s_mov_b32 s14, 4096
  s_mov_b32 s15, 0x00020000
  buffer_store_dword v2, v1, s[12:15], 0 offen
  s_waitcnt vmcnt(0)
  s_endpgm
""" + kd(k, 128, accum=96)
    names.append((k,128))
src += ".fill 256, 4, 0xBF800000\n"
co = build(src, names, "mb10")
if len(sys.argv) > 1 and sys.argv[1] == "build": raise SystemExit(0)
m = Mod(co)
buf = cl.DeviceBuffer(1<<20)
for name,bd in tests.items():
    f = m.fn(f"k_{name}")
    res=[]
    for nthreads in (256, 512, 768, 1024):
        for rep_ in range(2):
            launch(f, (1,1,1), (nthreads,1,1), [buf.ptr], lds=16384)
            sync()
        out = buf.to_numpy(np.uint32, (16,))[:nthreads//64]
        wps = nthreads//256
        res.append(f"{wps}w: {out.max()/(NIT*2*wps):7.2f}")
    print(f"{name:16s} cyc per phase per SIMD: " + " | ".join(res), flush=True)
```

```python
import sys
from mblib import *
def phase():
    o=[]
    mf = ["v_mfma_f32_32x32x16_bf16 v[80:95], v[2:5], v[8:11], v[80:95]", "v_mfma_f32_32x32x16_bf16 v[64:79], v[2:5], v[6:9], 0",
          "v_mfma_f32_32x32x8_bf16 v[64:79], v[2:3], v[6:7], v[64:79]", "v_mfma_f32_32x32x16_bf16 v[80:95], v[2:5], v[12:15], v[80:95]"]
    ex=[f"v_exp_f32 v{16+i}, v{32+i}" for i in range(16)]
    pk=[f"v_cvt_pk_bf16_f32 v{16+i%8}, v{32+2*i}, v{33+2*i}" for i in range(8)]
    for m in range(4):
        o.append(mf[m]); o += ex[4*m:4*m+4]; o += pk[2*m:2*m+2]
    return "\n".join(o)
NIT=200
def mk(k, mode, ndma):
    if mode == "none": prod = "  s_branch L_end_%s\n" % k
    else:
        ins = {"offen": "buffer_load_dwordx4 v1, s[20:23], s24 offen lds", "tid": "buffer_load_dwordx4 off, s[28:31], s24 lds", "reg": "buffer_load_dwordx4 v[40:43], v1, s[20:23], s24 offen"}[mode]
        prod = f"""  s_mov_b32 s25, {NIT*2}
L_p_{k}:
""" + "".join(f"  s_mov_b32 m0, {65536 + 0}\n  s_add_u32 m0, m0, s33\n  s_add_u32 s24, s24, 1024\n  s_and_b32 s24, s24, 0xfffff\n  {ins}\n" for i in range(ndma)) + f"""  s_waitcnt vmcnt(0)
  s_sub_u32 s25, s25, 1
  s_cmp_lg_u32 s25, 0
  s_cbranch_scc1 L_p_{k}
  s_memtime s[8:9]
  s_waitcnt lgkmcnt(0)
  s_branch L_out_{k}
"""
    return f""".globl {k}
.p2align 8
.type {k},@function
{k}:
  s_load_dwordx4 s[4:7], s[0:1], 0
  v_and_b32 v1, 63, v0
  v_lshlrev_b32 v1, 4, v1
  v_lshrrev_b32 v2, 6, v0
  s_nop 0
  v_readfirstlane_b32 s32, v2
""" + "\n".join(f"  v_mov_b32 v{i}, 0" for i in range(2,96)) + f"""
  s_waitcnt lgkmcnt(0)
  s_mov_b32 s20, s6
  s_mov_b32 s21, s7
  s_mov_b32 s22, 0x200000
  s_mov_b32 s23, 0x00020000
  s_mov_b32 s28, s6
  s_or_b32 s29, s7, 0x100000      ; stride 16 in [29:16]
  s_mov_b32 s30, 0x20000          ; num records (in units of stride)
  s_mov_b32 s31, 0x00820000       ; add_tid_enable bit 23
  s_mov_b32 s24, 0
  s_lshl_b32 s33, s32, 10
  s_barrier
  s_memtime s[6:7]
  s_waitcnt lgkmcnt(0)
  s_cmp_ge_u32 s32, 8
  s_cbranch_scc1 L_prod_{k}
  s_mov_b32 s10, {NIT}
.p2align 6
L_{k}:
{phase()}
{phase()}
  s_sub_u32 s10, s10, 1
  s_cmp_lg_u32 s10, 0
  s_cbranch_scc1 L_{k}
  s_memtime s[8:9]
  s_waitcnt lgkmcnt(0)
  s_branch L_out_{k}
L_prod_{k}:
{prod}
L_out_{k}:
  s_sub_u32 s8, s8, s6
  s_lshl_b32 s11, s32, 2
  v_mov_b32 v1, s11
  v_mov_b32 v2, s8
  s_mov_b32 s12, s4
  s_mov_b32 s13, s5
  s_mov_b32 s14, 4096
  s_mov_b32 s15, 0x00020000
  buffer_store_dword v2, v1, s[12:15], 0 offen
  s_waitcnt vmcnt(0)
L_end_{k}:
  s_endpgm
""" + kd(k, 96)
src = '.amdgcn_target "amdgcn-amd-amdhsa--gfx950"\n.text\n'
cfgs = [("k_none","none",0),("k_off1","offen",1),("k_off2","offen",2),("k_off4","offen",4),("k_tid2","tid",2),("k_tid4","tid",4),("k_reg2","reg",2)]
names=[]
for (k,m_,n) in cfgs:
    src += mk(k,m_,n); names.append((k,96))
src += ".fill 256, 4, 0xBF800000\n"
co = build(src, names, "mb11")
if len(sys.argv) > 1 and sys.argv[1] == "build": raise SystemExit(0)
m = Mod(co)
buf = cl.DeviceBuffer(1<<20); srcb = cl.DeviceBuffer(4<<20)
for (k,m_,n) in cfgs:
    f = m.fn(k)
    cl._check(hip.hipMemset(buf.ptr, 0, 4096))
    for rep_ in range(2):
        launch(f, (1,1,1), (768,1,1), [buf.ptr, srcb.ptr], lds=81920)
        sync()
    out = buf.to_numpy(np.uint32, (16,))[:12]
    comp = out[:8].max(); pr = out[8:].max()
    nd = n*NIT*2
    frac = min(1.0, comp/pr) if pr else 0
    print(f"{k}: compute {comp/(NIT*2*2):.1f} cyc/phase/SIMD ; producer total {pr} cyc for {nd} DMAs/wave ; DMAs during compute ~{nd*frac:.0f} -> extra cyc per DMA: {((comp - NIT*4*196.9)/(nd*frac)) if nd else 0:.1f}", flush=True)
```

```python
import sys
from mblib import *
src = '.amdgcn_target "amdgcn-amd-amdhsa--gfx950"\n.text\n'
k = "k_s"
src += f""".globl {k}
.p2align 8
.type {k},@function
{k}:
  s_load_dwordx4 s[4:7], s[0:1], 0      ; out, src
  s_load_dwordx4 s[8:11], s[0:1], 16    ; s8 = row stride, s10 = mode (0: rows of 128B x8 ; 1: contiguous 1KB with plane stride)
  v_and_b32 v1, 63, v0
  v_lshrrev_b32 v2, 6, v0
  s_nop 0
  v_readfirstlane_b32 s25, v2
  s_waitcnt lgkmcnt(0)
  s_mov_b32 s20, s6
  s_mov_b32 s21, s7
  s_mov_b32 s22, 0x2000000
  s_mov_b32 s23, 0x00020000
  ; lane offset
  v_lshrrev_b32 v3, 3, v1
  v_mul_lo_u32 v3, v3, s8
  v_and_b32 v4, 7, v1
  v_lshl_add_u32 v3, v4, 4, v3          ; mode 0
  v_lshlrev_b32 v5, 4, v1               ; mode 1
  s_cmp_eq_u32 s10, 1
  s_cselect_b64 vcc, -1, 0
  v_cndmask_b32 v1, v3, v5, vcc
  ; wave base: mode0: (wave*8 rows + (wg>>3 &3)*32 rows... )*rs ; mode1: (wave + 4*((wg>>3)&3))*rs
  s_lshr_b32 s26, s2, 3
  s_and_b32 s26, s26, 7
  s_lshl_b32 s26, s26, 2
  s_add_u32 s26, s26, s25               ; unit index 0..31
  s_mul_i32 s24, s26, s8
  s_cmp_eq_u32 s10, 1
  s_cselect_b32 s27, 0, 3
  s_lshl_b32 s24, s24, s27              ; mode0: x8 rows
  s_movk_i32 s28, 128
  s_cselect_b32 s28, 1024, s28
  s_lshl_b32 s33, s25, 13
  s_mov_b32 s29, 0
  s_barrier
  s_memtime s[12:13]
  s_waitcnt lgkmcnt(0)
  s_mov_b32 s30, 64
L_o:
  s_mov_b32 s31, s24
""" + "".join(f"""  s_add_u32 m0, s33, {i*1024}
  s_add_u32 s31, s31, s28
  buffer_load_dwordx4 v1, s[20:23], s31 offen lds
""" for i in range(8)) + f"""  s_waitcnt vmcnt(4)
  s_lshl_b32 s34, s28, 3
  s_add_u32 s29, s29, s34
  s_and_b32 s29, s29, s11               ; wrap k offset
  s_add_u32 s24, s24, s34
  s_sub_u32 s30, s30, 1
  s_cmp_lg_u32 s30, 0
  s_cbranch_scc0 L_d
  s_cmp_eq_u32 s29, 0
  s_cbranch_scc0 L_o
  s_add_u32 s35, s11, 1
  s_sub_u32 s24, s24, s35
  s_branch L_o
L_d:
  s_waitcnt vmcnt(0)
  s_memtime s[14:15]
  s_waitcnt lgkmcnt(0)
  s_sub_u32 s14, s14, s12
  v_cmp_eq_u32 vcc, 0, v0
  s_and_saveexec_b64 s[16:17], vcc
  s_cbranch_execz L_e
  s_lshl_b32 s11, s2, 2
  v_mov_b32 v1, s11
  v_mov_b32 v2, s14
  s_mov_b32 s20, s4
  s_mov_b32 s21, s5
  s_mov_b32 s22, 65536
  buffer_store_dword v2, v1, s[20:23], 0 offen
  s_waitcnt vmcnt(0)
L_e:
  s_endpgm
""" + kd(k, 32)
src += ".fill 256, 4, 0xBF800000\n"
co = build(src, [(k,32)], "mb12")
if len(sys.argv) > 1 and sys.argv[1] == "build": raise SystemExit(0)
m = Mod(co)
out = cl.DeviceBuffer(1<<20); srcb = cl.DeviceBuffer(0x2000000)
f = m.fn(k)
for name, rs, mode, kw in (("rows stride 4096", 4096, 0, 4096), ("rows stride 1280", 1280, 0, 1024), ("rows stride 4224", 4224, 0, 4096), ("planes 32768", 32768, 1, 32768), ("planes 33792", 33792, 1, 32768), ("planes 32768+128", 32896, 1, 32768)):
    for rep_ in range(3):
        launch(f, (256,1,1), (256,1,1), [out.ptr, srcb.ptr, rs, mode | ((kw-1) << 32)], lds=32768)
        sync()
    o = out.to_numpy(np.uint32, (4096,))[:256]
    byt = 64*8*4*1024
    print(f"{name}: cycles med {np.median(o):.0f} max {o.max()}  B/clk/CU {byt/np.median(o):.1f}", flush=True)
```
